```python
import torch

def _softmax(x, axis=-1):
    return torch.softmax(x, dim=axis)
def _gelu(x):
    return torch.nn.functional.gelu(x, approximate="tanh")
def _silu(x):
    return torch.nn.functional.silu(x)
def _sigmoid(x):
    return torch.sigmoid(x)
def _layernorm(x, axis=-1, eps=1e-5):
    m = x.mean(dim=axis, keepdim=True)
    v = x.var(dim=axis, keepdim=True, unbiased=False)
    return (x - m) / torch.sqrt(v + eps)
def _scatter_add(tgt, idx, src, axis=0):
    return tgt.clone().index_add_(axis, idx, src)
def _segment_sum(src, seg, n):
    out = torch.zeros((n,) + src.shape[1:], dtype=src.dtype)
    return out.index_add_(0, seg, src)
def _pad(x, pw):
    flat = tuple(v for pair in reversed(pw) for v in pair)
    return torch.nn.functional.pad(x, flat)

kernel_name = 'recurrent_scan__mha_block__swiglu_ffn__prompt'

def setup_inputs():

    _w = (lambda a: (lambda t: t.to(torch.bfloat16) if t.is_floating_point() else t)(torch.as_tensor(a)))
    def _A_setup():
        B, S, D, H = 1, 2048, 512, 32
        return {
            "x": _w((lambda *s: torch.randn(*s, dtype=torch.bfloat16) * 0.05)(B, S, D)),
            "wqkv": _w((lambda *s: torch.randn(*s, dtype=torch.bfloat16) * 0.05)(D, 3 * D)),
            "wo": _w((lambda *s: torch.randn(*s, dtype=torch.bfloat16) * 0.05)(D, D)),
        }
    _A_in = _A_setup()

    def _B_setup():
        B, S, D, F = 1, 2048, 512, 1792
        return {
            "x": _w((lambda *s: torch.randn(*s, dtype=torch.bfloat16) * 0.05)(B, S, D)),
            "w_gate": _w((lambda *s: torch.randn(*s, dtype=torch.bfloat16) * 0.05)(D, F)),
            "w_up": _w((lambda *s: torch.randn(*s, dtype=torch.bfloat16) * 0.05)(D, F)),
            "w_down": _w((lambda *s: torch.randn(*s, dtype=torch.bfloat16) * 0.05)(F, D)),
        }
    _B_in = _B_setup()

    return {
        "A_x": _A_in["x"],
        "A_wqkv": _A_in["wqkv"],
        "A_wo": _A_in["wo"],
        "B_x": _B_in["x"],
        "B_w_gate": _B_in["w_gate"],
        "B_w_up": _B_in["w_up"],
        "B_w_down": _B_in["w_down"],
    }

def reference(A_x, A_wqkv, A_wo, B_x, B_w_gate, B_w_up, B_w_down):
    def _A_ref(x, wqkv, wo):
        B, S, D = x.shape
        H = 32
        Dh = D // H
        qkv = (lambda x, *d: x.permute(*d))((x @ wqkv).reshape(B, S, 3, H, Dh), 2, 0, 3, 1, 4)
        q, k, v = qkv[0], qkv[1], qkv[2]
        scores = torch.einsum("bhqd,bhkd->bhqk", q, k) * (Dh ** -0.5)
        p = _softmax(scores, axis=-1)
        o = torch.einsum("bhqk,bhkd->bhqd", p, v)
        return (lambda x, *d: x.permute(*d))(o, 0, 2, 1, 3).reshape(B, S, D) @ wo

    def _B_ref(x, w_gate, w_up, w_down):
        g = _silu(x @ w_gate)
        u = x @ w_up
        return (g * u) @ w_down

    x = A_x
    xn = _layernorm(x, axis=-1)
    s = _A_ref(xn, A_wqkv, A_wo)
    g = _silu(_B_ref(xn, B_w_gate, B_w_up, B_w_down))
    return x + s * g
```

```python
import re

def v(n, c=1):
    return f"v{n}" if c == 1 else f"v[{n}:{n+c-1}]"
def s(n, c=1):
    return f"s{n}" if c == 1 else f"s[{n}:{n+c-1}]"

_REG = re.compile(r"^(-|abs\(|\|)?\s*([vsa])(\d+)\)?\|?$")
_REGR = re.compile(r"^([vsa])\[(\d+):(\d+)\]$")

def regs_of(tok):
    tok = tok.strip()
    if tok.startswith("-"): tok = tok[1:].strip()
    if tok.startswith("abs(") and tok.endswith(")"): tok = tok[4:-1]
    if tok.startswith("|") and tok.endswith("|"): tok = tok[1:-1]
    m = _REGR.match(tok)
    if m:
        return {(m.group(1), i) for i in range(int(m.group(2)), int(m.group(3)) + 1)}
    m = re.match(r"^([vsa])(\d+)$", tok)
    if m:
        return {(m.group(1), int(m.group(2)))}
    if tok == "vcc": return {("x", "vcc")}
    if tok == "exec": return {("x", "exec")}
    if tok == "m0": return {("x", "m0")}
    return set()

TRANS = ("v_exp_", "v_log_", "v_rcp_", "v_rsq_", "v_sqrt_", "v_sin_", "v_cos_")

class Ins:
    __slots__ = ("text", "op", "kind", "dst", "src", "nops", "passes", "srcC", "srcAB", "tag", "idx", "is_dot",
                 "is_trans", "is_dpp", "is_sdwa", "wide_store", "lds_dma", "comment")
    def __init__(self, text, tag=None):
        self.text = text
        self.tag = tag
        self.nops = 0
        self.passes = 0
        self.srcC = set(); self.srcAB = set()
        self.is_dot = self.is_trans = self.is_dpp = self.is_sdwa = self.wide_store = self.lds_dma = False
        parts = text.split(None, 1)
        op = parts[0]; self.op = op
        rest = parts[1] if len(parts) > 1 else ""
        ops = []; cur = ""; depth = 0
        for ch in rest:
            if ch in "[(": depth += 1
            if ch in "])": depth -= 1
            if ch == "," and depth == 0:
                ops.append(cur.strip()); cur = ""
            else:
                cur += ch
        if cur.strip(): ops.append(cur.strip())
        mods = ""
        if ops:
            last = ops[-1].split(None, 1)
            ops[-1] = last[0]
            if len(last) > 1: mods = last[1]
        R = [regs_of(o) for o in ops]
        allr = lambda L: set().union(*L) if L else set()
        dst = set(); src = set()
        if op.startswith("v_mfma") or op.startswith("v_smfmac"):
            self.kind = "mfma"
            self.passes = 8 if "32x32" in op else 4
            dst = R[0]
            if op.startswith("v_smfmac"):
                self.srcC = set(R[0]); self.srcAB = R[1] | R[2] | R[3]
            else:
                self.srcC = R[3]; self.srcAB = R[1] | R[2]
            src = self.srcC | self.srcAB
        elif op.startswith("v_"):
            self.kind = "valu"
            self.is_trans = op.startswith(TRANS)
            self.is_dot = op.startswith("v_dot")
            self.is_dpp = ("quad_perm" in mods or "row_" in mods or "_dpp" in op)
            self.is_sdwa = "_sdwa" in op
            if op.startswith("v_permlane"):
                dst = R[0] | R[1]; src = R[0] | R[1]
            elif op.startswith("v_cmp"):
                dst = R[0]; src = allr(R[1:])
            elif op.startswith(("v_fmac", "v_dot2c", "v_mac", "v_pk_fmac")):
                dst = R[0]; src = allr(R)
            elif "UNUSED_PRESERVE" in mods:
                dst = R[0]; src = allr(R)
            else:
                dst = R[0]; src = allr(R[1:])
            if op.startswith("v_cndmask") and len(ops) == 3:
                src |= {("x", "vcc")}
            if self.is_dot and not op.startswith("v_dot2c"):
                self.srcC = R[3] if len(R) > 3 else set(); self.srcAB = R[1] | R[2]
        elif op.startswith("ds_"):
            self.kind = "ds"
            if op.startswith(("ds_read", "ds_bpermute", "ds_permute", "ds_swizzle")):
                dst = R[0]; src = allr(R[1:])
            else:
                src = allr(R)
        elif op.startswith(("buffer_", "global_")):
            self.kind = "vmem"
            is_lds = bool(re.search(r"\blds\b", mods)) or "_lds_" in op
            if "load" in op:
                if is_lds:
                    self.lds_dma = True; src = allr(R) | {("x", "m0")}
                else:
                    dst = R[0]; src = allr(R[1:])
                    if "d16" in op: src |= R[0]
            elif "atomic" in op:
                src = allr(R)
                if "sc0" in mods: dst = R[0]
            elif op.startswith(("buffer_wbl2", "buffer_inv")):
                pass
            else:
                src = allr(R)
                if "x4" in op or "x3" in op: self.wide_store = True
        elif op in ("s_waitcnt", "s_nop", "s_barrier", "s_endpgm", "s_setprio", "s_sleep") or op.startswith(("s_branch", "s_cbranch")):
            self.kind = "ctl"
        elif op.startswith(("s_load", "s_memtime", "s_memrealtime")):
            self.kind = "smem"; dst = R[0]; src = allr(R[1:])
        elif op.startswith("s_cmp"):
            self.kind = "salu"; src = allr(R)
        elif op.startswith("s_"):
            self.kind = "salu"; dst = R[0]; src = allr(R[1:])
            if "saveexec" in op:
                dst = dst | {("x", "exec")}; src = src | {("x", "exec")}
        else:
            raise ValueError("unknown op " + text)
        self.dst = dst; self.src = src
    def ws(self):
        if self.op == "s_nop":
            return int(self.text.split()[1], 0) + 1
        return 1

class Prog:
    def __init__(self):
        self.items = []
        self.vm = []
        self.lg = []
    def raw(self, text):
        self.items.append(text)
    def label(self, name):
        self.items.append(name + ":")
    def I(self, text, tag=None):
        ins = Ins(text, tag)
        self.items.append(ins)
        if ins.kind == "vmem" and not ins.op.startswith(("buffer_wbl2", "buffer_inv")): self.vm.append(ins)
        if ins.kind == "ds": self.lg.append(ins)
        return ins
    def wait_vm(self, ins_list):
        if not isinstance(ins_list, (list, tuple)): ins_list = [ins_list]
        idxs = [self.vm.index(i) for i in ins_list if i in self.vm]
        if not idxs: return None
        k = max(idxs)
        n = len(self.vm) - 1 - k
        assert n <= 63, n
        self.vm = self.vm[k+1:]
        return self.I(f"s_waitcnt vmcnt({n})")
    def wait_lg(self, ins_list):
        if not isinstance(ins_list, (list, tuple)): ins_list = [ins_list]
        idxs = [self.lg.index(i) for i in ins_list if i in self.lg]
        if not idxs: return None
        k = max(idxs)
        n = len(self.lg) - 1 - k
        if n > 15:
            n = 15; k = len(self.lg) - 1 - n
        self.lg = self.lg[k+1:]
        return self.I(f"s_waitcnt lgkmcnt({n})")
    def wait_all(self, vm=True, lg=True):
        t = []
        if vm: t.append("vmcnt(0)"); self.vm = []
        if lg: t.append("lgkmcnt(0)"); self.lg = []
        return self.I("s_waitcnt " + " ".join(t))
    def snapshot(self):
        return (list(self.vm), list(self.lg))
    def restore(self, snap):
        self.vm, self.lg = list(snap[0]), list(snap[1])
    def mark(self):
        return len(self.items)
    def slice(self, a, b=None):
        return [x for x in self.items[a:b] if isinstance(x, Ins)]
    def text(self):
        out = []
        for x in self.items:
            if isinstance(x, Ins):
                n = x.nops
                while n > 0:
                    k = min(n, 16)
                    out.append(f"    s_nop {k-1}")
                    n -= k
                out.append("    " + x.text)
            else:
                out.append(x)
        return "\n".join(out) + "\n"

def need(prod, cons):
    n = 0
    pv = {r for r in prod.dst if r[0] in "va"}
    ps = {r for r in prod.dst if r[0] == "s" or r == ("x", "vcc")}
    if prod.kind == "valu":
        if cons.kind == "mfma" and pv & cons.src: n = max(n, 2)
        if cons.kind == "valu":
            if prod.is_trans and (pv & cons.src): n = max(n, 1)
            if prod.is_sdwa and (pv & (cons.src | cons.dst)): n = max(n, 1)
            if cons.is_dpp and (pv & cons.src): n = max(n, 2)
            if cons.op.startswith("v_permlane") and (pv & cons.src): n = max(n, 2)
            if cons.op.startswith(("v_readlane", "v_readfirstlane")) and (pv & cons.src): n = max(n, 1)
            if ps & cons.src:
                n = max(n, 4 if cons.op.startswith(("v_readlane", "v_writelane")) else 2)
            if prod.is_dot and (pv & (cons.src | cons.dst)):
                if cons.op == prod.op and not (pv & cons.srcAB):
                    pass
                else:
                    n = max(n, 3)
        if prod.is_dot and cons.kind in ("mfma", "ds", "vmem") and (pv & cons.src): n = max(n, 3)
        if cons.kind == "vmem" and (ps & cons.src): n = max(n, 5)
        if cons.kind == "salu" and (ps & cons.src): n = max(n, 4)
        if ("x", "exec") in prod.dst: n = max(n, 5)
    if prod.kind == "mfma":
        P = prod.passes
        if cons.kind == "mfma":
            if pv & cons.srcAB: n = max(n, 12 if P == 8 else 8)
            if pv & cons.srcC:
                if not (cons.srcC == pv and cons.passes == P): n = max(n, 10 if P == 8 else 6)
            elif pv & cons.dst:
                if not (cons.dst == pv and cons.passes == P): n = max(n, 10 if P == 8 else 6)
        elif cons.kind == "valu":
            if pv & (cons.src | cons.dst): n = max(n, 12 if P == 8 else 8)
            if prod.srcC & cons.dst: n = max(n, 7 if P == 8 else 3)
        elif cons.kind in ("ds", "vmem"):
            if pv & (cons.src | cons.dst): n = max(n, 12 if P == 8 else 8)
    if prod.kind == "vmem" and prod.wide_store:
        data = {r for r in prod.src if r[0] == "v"}
        if cons.kind in ("valu", "mfma") and (data & cons.dst): n = max(n, 2)
        elif data & cons.dst: n = max(n, 1)
    if prod.kind == "salu" and ("x", "m0") in prod.dst and cons.lds_dma: n = max(n, 1)
    return n

def fix_hazards(trace, window=24):
    added = 0
    for j, c in enumerate(trace):
        if c.kind == "ctl" and c.op in ("s_nop",): continue
        dist = c.nops
        req = 0
        k = j - 1
        while k >= 0 and dist < window:
            p = trace[k]
            nd = need(p, c)
            if nd > dist: req = max(req, nd - dist)
            dist += p.ws() + p.nops
            k -= 1
        if req:
            c.nops += req; added += req
    return added

def check_waits(trace, name=""):
    vm = []; lg = []; sm = []
    errs = []
    for i, c in enumerate(trace):
        if c.op == "s_waitcnt":
            for m in re.finditer(r"(vmcnt|lgkmcnt)\((\d+)\)", c.text):
                n = int(m.group(2))
                if m.group(1) == "vmcnt":
                    while len(vm) > n: vm.pop(0)
                else:
                    if sm:
                        if n == 0: sm = []; lg = []
                    else:
                        while len(lg) > n: lg.pop(0)
            continue
        touched = c.src | c.dst
        for q, nm in ((vm, "vm"), (lg, "lgkm"), (sm, "smem")):
            for p in q:
                if p.dst & touched:
                    d16 = ("d16" in c.op and "d16" in p.op and nm == "vm")
                    if not d16:
                        errs.append(f"{name}: [{i}] '{c.text}' touches {sorted(p.dst & touched)[:4]} pending from {nm} '{p.text}'")
        if c.kind == "vmem" and not c.op.startswith(("buffer_wbl2", "buffer_inv")): vm.append(c)
        elif c.kind == "ds": lg.append(c)
        elif c.kind == "smem": sm.append(c)
        if len(vm) > 63: errs.append(f"{name}: [{i}] vm queue > 63")
    return errs
```

```python
from asmlib import *

WS_QF = 0x000000
WS_KF = 0x200000
WS_VF = 0x400000
WS_OF = 0x600000
WS_WF = 0x800000
WS_G  = 0xB00000
WS_HF = 0x1000000
WS_SIZE = 0x1800000

LOG2E = 1.4426950408889634
import struct
def f32(x):
    return "0x%08x" % struct.unpack("<I", struct.pack("<f", x))[0]

def srd(p, base, ptr, nbytes):
    p.I(f"s_mov_b32 s{base}, s{ptr}")
    p.I(f"s_mov_b32 s{base+1}, s{ptr+1}")
    p.I(f"s_mov_b32 s{base+2}, {hex(nbytes)}")
    p.I(f"s_mov_b32 s{base+3}, 0x20000")

def kernel_header(p, name):
    p.raw(f".globl {name}")
    p.raw(".p2align 8")
    p.raw(f".type {name},@function")
    p.label(name)

def kernel_desc(name, vgprs, sgprs=96):
    acc = (vgprs + 3) // 4 * 4
    return f""".p2align 6
.amdhsa_kernel {name}
  .amdhsa_next_free_vgpr {vgprs}
  .amdhsa_next_free_sgpr {sgprs}
  .amdhsa_accum_offset {acc}
  .amdhsa_group_segment_fixed_size 0
  .amdhsa_kernarg_size 80
  .amdhsa_user_sgpr_count 2
  .amdhsa_user_sgpr_kernarg_segment_ptr 1
  .amdhsa_system_sgpr_workgroup_id_x 1
.end_amdhsa_kernel
"""

class Filler:
    def __init__(self): self.q = []
    def add(self, fn): self.q.append(fn)
    def extend(self, fns): self.q.extend(fns)
    def pop(self, n):
        for _ in range(n):
            if not self.q: return
            self.q.pop(0)()
    def drain(self):
        while self.q: self.q.pop(0)()
    def __len__(self): return len(self.q)
```

```python
from common import *

NAME = "k1_kernel"
LDS = 163840
sX, sQ, sF, sP, sWS, sP2 = 20, 24, 28, 32, 36, 60
sW, sR, sI, sType, sLdsW, sBQ, sBF, sT0, sT1 = 40, 41, 42, 43, 44, 45, 46, 47, 48
sOutQK, sOutV, sOutH, sOnes, sSelLo, sSelHi = 49, 50, 51, 52, 53, 54
sPs0, sPs1, sPd, sQs0, sQs1, sQd = 55, 56, 57, 58, 59, 64
sA, sB, sC = 65, 66, 67
vLane, vL16, vKperm, vVoff, vDmaQ, vDmaF, vTrQ, vTrF, vTr = 1, 2, 3, 4, 5, 6, 7, 8, 9
vRd = [10, 11, 12, 13]
vStW, vXoff = 14, 15
vRstd, vNa, vVar, vCq = 16, 17, 18, 19
vNegMu = [20, 21]; vRs = [22, 23]; vCh = [24, 28]
ACC = [32, 48]
XRAW = [64, 96]
WF = [64, 68, 72, 76]
vT = 80
vPre = 96
vRsV = 112
XF = 128
SLOT = [131072, 0, 32768, 65536, 98304, 131072, 0, 32768, 65536, 98304]
RS_LDS = 98304

def gen(p):
    kernel_header(p, NAME)
    m0 = p.mark()
    I = p.I
    I("s_cmp_ge_u32 s2, 256")
    I(f"s_cbranch_scc1 L_{NAME}_end")
    I("s_load_dwordx4 s[4:7], s[0:1], 0")
    I("s_load_dwordx2 s[8:9], s[0:1], 16")
    I("s_load_dwordx4 s[12:15], s[0:1], 32")
    I("s_load_dwordx2 s[16:17], s[0:1], 48")
    I("s_load_dwordx2 s[18:19], s[0:1], 72")
    I(f"v_and_b32 v{vLane}, 63, v0")
    I(f"v_lshrrev_b32 v2, 6, v0")
    I(f"v_readfirstlane_b32 s{sW}, v2")
    I(f"s_and_b32 s{sA}, s2, 7")
    I(f"s_lshr_b32 s{sB}, s2, 3")
    I(f"s_and_b32 s{sR}, s{sA}, 1")
    I(f"s_lshl_b32 s{sR}, s{sR}, 3")
    I(f"s_and_b32 s{sC}, s{sB}, 7")
    I(f"s_add_u32 s{sR}, s{sR}, s{sC}")
    I(f"s_lshr_b32 s{sA}, s{sA}, 1")
    I(f"s_lshl_b32 s{sA}, s{sA}, 2")
    I(f"s_lshr_b32 s{sB}, s{sB}, 3")
    I(f"s_add_u32 s{sA}, s{sA}, s{sB}")
    I(f"s_lshr_b32 s{sI}, s{sA}, 1")
    I(f"s_and_b32 s{sType}, s{sA}, 1")
    I(f"v_lshrrev_b32 v24, 3, v{vLane}")
    I(f"v_and_b32 v25, 7, v{vLane}")
    I(f"s_lshl_b32 s{sA}, s{sR}, 7")
    I(f"s_lshl_b32 s{sB}, s{sW}, 4")
    I(f"s_add_u32 s{sA}, s{sA}, s{sB}")
    I(f"v_add_u32 v26, s{sA}, v24")
    I(f"v_lshlrev_b32 v26, 10, v26")
    I(f"v_lshl_add_u32 v{vXoff}, v25, 4, v26")
    I(f"v_lshrrev_b32 v26, 2, v{vLane}")
    I(f"v_and_b32 v27, 3, v{vLane}")
    I(f"v_mul_u32_u24 v28, 3072, v26")
    I(f"v_lshl_add_u32 v{vDmaQ}, v27, 4, v28")
    I(f"s_lshr_b32 s{sA}, s{sW}, 2")
    I(f"s_lshl_b32 s{sB}, s{sA}, 1")
    I(f"v_xor_b32 v27, s{sB}, v27")
    I(f"v_mul_u32_u24 v28, 3584, v26")
    I(f"v_lshl_add_u32 v{vDmaF}, v27, 4, v28")
    I(f"s_and_b32 s{sC}, s{sW}, 3")
    I(f"s_lshl_b32 s{sLdsW}, s{sA}, 14")
    I(f"s_lshl_b32 s{sB}, s{sC}, 12")
    I(f"s_add_u32 s{sLdsW}, s{sLdsW}, s{sB}")
    I(f"s_mul_i32 s{sBQ}, s{sC}, {64*3072}")
    I(f"s_lshl_b32 s{sB}, s{sI}, 7")
    I(f"s_add_u32 s{sBQ}, s{sBQ}, s{sB}")
    I(f"s_lshl_b32 s{sB}, s{sA}, 6")
    I(f"s_add_u32 s{sBQ}, s{sBQ}, s{sB}")
    I(f"s_mul_i32 s{sBF}, s{sC}, {64*3584}")
    I(f"s_mul_i32 s{sB}, s{sI}, 7")
    I(f"s_mul_i32 s{sT0}, s{sType}, 3")
    I(f"s_add_u32 s{sB}, s{sB}, s{sT0}")
    I(f"s_lshl_b32 s{sT0}, s{sB}, 6")
    I(f"s_add_u32 s{sBF}, s{sBF}, s{sT0}")
    I(f"s_lshl_b32 s{sT0}, s{sR}, 2")
    I(f"s_add_u32 s{sT0}, s{sT0}, s{sC}")
    I(f"s_mul_i32 s{sOutH}, s{sT0}, 112")
    I(f"s_lshl_b32 s{sB}, s{sB}, 1")
    I(f"s_add_u32 s{sOutH}, s{sOutH}, s{sB}")
    I(f"s_add_u32 s{sOutH}, s{sOutH}, s{sA}")
    I(f"s_lshl_b32 s{sOutH}, s{sOutH}, 10")
    I(f"s_add_u32 s{sOutH}, s{sOutH}, {hex(WS_HF)}")
    I(f"s_lshl_b32 s{sB}, s{sI}, 1")
    I(f"s_add_u32 s{sB}, s{sB}, s{sA}")
    I(f"s_lshl_b32 s{sB}, s{sB}, 7")
    I(f"s_add_u32 s{sB}, s{sB}, s{sT0}")
    I(f"s_lshl_b32 s{sOutQK}, s{sB}, 10")
    I(f"s_add_u32 s{sOutV}, s{sOutQK}, {hex(WS_VF)}")
    I(f"s_mov_b32 s{sOnes}, 0x3f803f80")
    I(f"s_mov_b32 s{sSelLo}, 0x00003f80")
    I(f"s_mov_b32 s{sSelHi}, 0x3f800000")
    I("s_waitcnt lgkmcnt(0)")
    srd(p, sX, 4, 2048*1024)
    xl = [[None]*8 for _ in range(2)]
    I(f"s_mov_b32 s{sT1}, 8192")
    for g in range(2):
        for c in range(8):
            so = "0" if g == 0 else f"s{sT1}"
            xl[g][c] = I(f"buffer_load_dwordx4 {v(XRAW[g]+4*c,4)}, v{vXoff}, {s(sX,4)}, {so} offen offset:{c*128}")
    srd(p, sQ, 6, 512*3072)
    I(f"s_cmp_ge_u32 s{sW}, 4")
    I(f"s_cselect_b32 s{sF}, s14, s12")
    I(f"s_cselect_b32 s{sF+1}, s15, s13")
    I(f"s_mov_b32 s{sF+2}, {hex(512*3584)}")
    I(f"s_mov_b32 s{sF+3}, 0x20000")
    srd(p, sWS, 18, WS_SIZE)

    def dma(u, kinds):
        kind, arg = kinds[u >> 1]
        kh = u & 1
        hs = []
        for i in range(4):
            st = sT0 if i % 2 == 0 else sT1
            I(f"s_add_u32 m0, s{sLdsW}, {SLOT[u] + i*1024}")
            if kind in "QKV":
                part = "QKV".index(kind)
                I(f"s_add_u32 s{st}, s{sBQ}, {part*1024 + (kh*256 + 16*i)*3072}")
                hs.append(I(f"buffer_load_dwordx4 v{vDmaQ}, {s(sQ,4)}, s{st} offen lds"))
            else:
                I(f"s_add_u32 s{st}, s{sBF}, {arg*64 + (kh*256 + 16*i)*3584}")
                hs.append(I(f"buffer_load_dwordx4 v{vDmaF}, {s(sF,4)}, s{st} offen lds"))
        return hs
    I(f"s_lshl_b32 s{sA}, s{sType}, 11")
    I(f"s_add_u32 s{sA}, s{sA}, s{sBQ}")
    u0 = []
    for i in range(4):
        st = sT0 if i % 2 == 0 else sT1
        I(f"s_add_u32 m0, s{sLdsW}, {SLOT[0] + i*1024}")
        I(f"s_add_u32 s{st}, s{sA}, {(16*i)*3072}")
        u0.append(I(f"buffer_load_dwordx4 v{vDmaQ}, {s(sQ,4)}, s{st} offen lds"))

    I(f"v_lshlrev_b32 v{vL16}, 4, v{vLane}")
    I(f"v_and_b32 v26, 0x33, v{vLane}")
    I(f"v_and_b32 v27, 4, v{vLane}")
    I(f"v_lshl_or_b32 v26, v27, 1, v26")
    I(f"v_and_b32 v27, 8, v{vLane}")
    I(f"v_lshrrev_b32 v27, 1, v27")
    I(f"v_or_b32 v26, v26, v27")
    I(f"v_lshlrev_b32 v{vKperm}, 4, v26")
    I(f"v_bfe_u32 v26, v{vLane}, 4, 1")
    I(f"v_lshlrev_b32 v26, 16, v26")
    I(f"v_lshrrev_b32 v27, 5, v{vLane}")
    I(f"v_lshl_add_u32 v26, v27, 8, v26")
    I(f"v_and_b32 v27, 15, v{vLane}")
    I(f"v_lshl_add_u32 v{vVoff}, v27, 4, v26")
    I(f"v_bfe_u32 v26, v{vLane}, 2, 2")
    I(f"v_lshrrev_b32 v27, 5, v{vLane}")
    I(f"v_lshl_add_u32 v26, v27, 3, v26")
    I(f"v_lshlrev_b32 v26, 6, v26")
    I(f"v_and_b32 v27, 3, v{vLane}")
    I(f"v_lshl_add_u32 v26, v27, 3, v26")
    I(f"v_bfe_u32 v27, v{vLane}, 4, 1")
    I(f"s_lshr_b32 s{sA}, s{sW}, 2")
    I(f"s_lshl_b32 s{sB}, s{sA}, 14")
    I(f"v_lshl_add_u32 v{vTrQ}, v27, 5, v26")
    I(f"v_add_u32 v{vTrQ}, s{sB}, v{vTrQ}")
    I(f"v_lshl_add_u32 v28, v27, 14, v26")
    I(f"v_xor_b32 v27, s{sA}, v27")
    I(f"v_lshl_add_u32 v{vTrF}, v27, 5, v28")
    I(f"v_xor_b32 v26, v24, v25")
    I(f"s_and_b32 s{sA}, s{sW}, 1")
    I(f"s_lshl_b32 s{sA}, s{sA}, 8")
    I(f"s_lshr_b32 s{sB}, s{sW}, 1")
    I(f"s_lshl_b32 s{sB}, s{sB}, 15")
    I(f"s_add_u32 s{sA}, s{sA}, s{sB}")
    I(f"v_lshlrev_b32 v26, 4, v26")
    I(f"v_add_u32 v26, s{sA}, v26")
    I(f"v_lshrrev_b32 v27, 1, v25")
    I(f"v_lshl_add_u32 v26, v27, 10, v26")
    I(f"v_and_b32 v27, 1, v25")
    I(f"v_lshl_add_u32 v{vStW}, v27, 9, v26")
    I(f"s_and_b32 s{sA}, s{sW}, 3")
    I(f"s_lshl_b32 s{sA}, s{sA}, 15")
    I(f"v_and_b32 v26, 31, v{vLane}")
    I(f"v_lshrrev_b32 v27, 5, v{vLane}")
    for m in range(4):
        I(f"v_add_u32 v28, {2*m}, v27")
        I(f"v_xor_b32 v28, v26, v28")
        I(f"v_lshlrev_b32 v28, 4, v28")
        I(f"v_lshl_add_u32 v28, v27, 9, v28")
        I(f"v_add_u32 v28, s{sA}, v28")
        I(f"v_add_u32 v{vRd[m]}, {m*1024}, v28")
    I(f"s_lshl_b32 s{sA}, s{sW}, 6")
    I(f"s_add_u32 s{sA}, s{sA}, {RS_LDS}")
    I(f"v_lshlrev_b32 v24, 2, v24")
    I(f"v_add_u32 v{vLane}, s{sA}, v24")
    vRsW = vLane

    tmp = XF
    wr = []
    for g in range(2):
        C = vCh[g]
        for c in range(8):
            p.wait_vm(xl[g][c])
            for e in range(4):
                x = XRAW[g] + 4*c + e
                I(f"v_dot2_f32_bf16 v{C+e}, v{x}, s{sOnes}, {'0' if c == 0 else v(C+e)}")
        I(f"v_add_f32 v{C}, v{C}, v{C+1}")
        I(f"v_add_f32 v{C+2}, v{C+2}, v{C+3}")
        I(f"v_add_f32 v{C}, v{C}, v{C+2}")
        I(f"v_add_f32_dpp v{C}, v{C}, v{C} quad_perm:[1,0,3,2] row_mask:0xf bank_mask:0xf")
        I(f"v_add_f32_dpp v{C}, v{C}, v{C} quad_perm:[2,3,0,1] row_mask:0xf bank_mask:0xf")
        I(f"v_add_f32_dpp v{C}, v{C}, v{C} row_half_mirror row_mask:0xf bank_mask:0xf")
        I(f"v_mul_f32 v{vNegMu[g]}, {f32(-1.0/512)}, v{C}")
        for b in range(4):
            xs = [XRAW[g] + 8*b + k for k in range(8)]
            for k, x in enumerate(xs):
                I(f"v_dot2_f32_bf16 v{tmp+2*k}, v{x}, s{sSelLo}, v{vNegMu[g]}")
                I(f"v_dot2_f32_bf16 v{tmp+2*k+1}, v{x}, s{sSelHi}, v{vNegMu[g]}")
            for k, x in enumerate(xs):
                I(f"v_cvt_pk_bf16_f32 v{x}, v{tmp+2*k}, v{tmp+2*k+1}")
            for k, x in enumerate(xs):
                first = (b == 0 and k < 4)
                I(f"v_dot2_f32_bf16 v{C+(k&3)}, v{x}, v{x}, {'0' if first else v(C+(k&3))}")
            for cc in range(2):
                c = 2*b + cc
                wr.append(I(f"ds_write_b128 v{vStW}, {v(XRAW[g]+4*c,4)} offset:{c*4096 + g*128}"))
            if len(p.lg) > 12: p.wait_lg(p.lg[-9])
        I(f"v_add_f32 v{C}, v{C}, v{C+1}")
        I(f"v_add_f32 v{C+2}, v{C+2}, v{C+3}")
        I(f"v_add_f32 v{C}, v{C}, v{C+2}")
        I(f"v_add_f32_dpp v{C}, v{C}, v{C} quad_perm:[1,0,3,2] row_mask:0xf bank_mask:0xf")
        I(f"v_add_f32_dpp v{C}, v{C}, v{C} quad_perm:[2,3,0,1] row_mask:0xf bank_mask:0xf")
        I(f"v_add_f32_dpp v{C}, v{C}, v{C} row_half_mirror row_mask:0xf bank_mask:0xf")
        I(f"v_mul_f32 v{C}, {f32(1.0/512)}, v{C}")
        I(f"v_add_f32 v{C}, {f32(1e-5)}, v{C}")
        I(f"v_rsq_f32 v{vRs[g]}, v{C}")
    p.wait_all(vm=False)
    I("s_barrier")
    xr = []
    for sidx in range(32):
        xr.append(I(f"ds_read_b128 {v(XF+4*sidx,4)}, v{vRd[sidx&3]} offset:{(sidx>>2)*4096}"))
        if len(p.lg) > 12: p.wait_lg(p.lg[-9])
    p.wait_all(vm=False)
    p.wait_vm(u0)
    I("s_barrier")
    mark_branch = p.mark()
    I(f"s_cmp_eq_u32 s{sType}, 1")
    I(f"s_cbranch_scc1 L_{NAME}_typeA")
    pro_end = p.mark()
    snap = p.snapshot()

    def body(kinds):
        fill = Filler()
        dm = {0: u0}
        for u in (1, 2, 3): dm[u] = dma(u, kinds)
        rw = [I(f"ds_write_b32 v{vRsW}, v{vRs[0]}"), I(f"ds_write_b32 v{vRsW}, v{vRs[1]} offset:32")]
        def trbase(u):
            kind = kinds[u >> 1][0]
            I(f"v_add_u32 v{vTr}, {SLOT[u]}, v{vTrQ if kind in 'QKV' else vTrF}")
        trbase(0)
        R = {}
        rsr = []
        sched = {2: [4, 5], 3: [6], 4: [7], 5: [8], 6: [9]}
        st = {}
        def rstd_reads():
            I(f"s_and_b32 s{sA}, s{sW}, 3")
            I(f"s_lshl_b32 s{sA}, s{sA}, 7")
            I(f"s_add_u32 s{sA}, s{sA}, {RS_LDS}")
            I(f"v_bfe_u32 v26, v{vL16}, 4, 5")
            I(f"v_lshlrev_b32 v26, 2, v26")
            I(f"v_add_u32 v26, s{sA}, v26")
            rsr.append(I(f"ds_read_b32 v{vRstd}, v26"))
            if kinds[0][0] == "V":
                I(f"v_lshrrev_b32 v27, 9, v{vL16}")
                I(f"v_lshlrev_b32 v27, 4, v27")
                I(f"v_add_u32 v27, s{sA}, v27")
                for q4 in range(4):
                    rsr.append(I(f"ds_read_b128 {v(vRsV+4*q4,4)}, v27 offset:{q4*32}"))
        def rstd_derive():
            p.wait_lg(rsr)
            I(f"v_mul_f32 v{vNa}, {f32(-LOG2E)}, v{vRstd}")
            I(f"v_mul_f32 v{vVar}, v{vRstd}, v{vRstd}")
            I(f"v_mul_f32 v{vCq}, {f32(0.25*LOG2E)}, v{vRstd}")
            I(f"v_rcp_f32 v{vVar}, v{vVar}")
        def boundary(u):
            if u == 1: p.wait_lg(rw)
            if u == 2: p.wait_lg(rsr)
            p.wait_vm(dm[u])
            I("s_barrier")
            for uu in sched.get(u, []): dm[uu] = dma(uu, kinds)
            trbase(u)
            if u == 1:
                rstd_reads()
                pretile_loads(0)
            if u == 2:
                rstd_derive()
            if u == 3:
                pretile_store(0); pretile_loads(1)
            if u == 5:
                pretile_store(1)
        def pretile_loads(which):
            sa, sb, sd, sr = (sPs0, sPs1, sPd, sP) if which == 0 else (sQs0, sQs1, sQd, sP2)
            I(f"s_lshr_b32 s{sA}, s2, 4")
            I(f"s_mul_i32 s{sA}, s{sA}, 9")
            if which == 0: I(f"s_add_u32 s{sA}, s{sA}, s{sW}")
            else: I(f"s_add_u32 s{sA}, s{sA}, 8")
            I(f"s_and_b32 s{sB}, s2, 15")
            I(f"s_mul_i32 s{sd}, s{sB}, 144")
            I(f"s_add_u32 s{sd}, s{sd}, s{sA}")
            I(f"s_lshl_b32 s{sd}, s{sd}, 10")
            I(f"s_add_u32 s{sd}, s{sd}, {hex(WS_WF)}")
            if which == 1:
                I(f"s_cmp_eq_u32 s{sW}, 0")
                I(f"s_cselect_b32 s{sd}, s{sd}, {hex(WS_SIZE)}")
            I(f"s_sub_u32 s{sC}, s{sA}, 112")
            I(f"s_cmp_ge_u32 s{sA}, 112")
            I(f"s_cselect_b32 s{sA}, s{sC}, s{sA}")
            I(f"s_cselect_b32 s{sr}, s8, s16")
            I(f"s_cselect_b32 s{sr+1}, s9, s17")
            I(f"s_mov_b32 s{sr+2}, {hex(1792*1024)}")
            I(f"s_cselect_b32 s{sr+2}, {hex(512*1024)}, s{sr+2}")
            I(f"s_mov_b32 s{sr+3}, 0x20000")
            I(f"s_lshl_b32 s{sa}, s{sA}, 14")
            I(f"s_lshl_b32 s{sB}, s{sB}, 6")
            I(f"s_add_u32 s{sa}, s{sa}, s{sB}")
            I(f"s_add_u32 s{sb}, s{sa}, 8192")
            I(f"v_lshrrev_b32 v26, 9, v{vL16}")
            I(f"v_lshlrev_b32 v26, 12, v26")
            I(f"v_bfe_u32 v27, v{vL16}, 4, 5")
            I(f"v_lshl_add_u32 v26, v27, 1, v26")
            hs = []
            for j in range(8):
                op = "buffer_load_ushort" if j % 2 == 0 else "buffer_load_short_d16_hi"
                so = sa if j < 4 else sb
                hs.append(I(f"{op} v{vPre+j}, v26, {s(sr,4)}, s{so} offen offset:{(j&3)*1024}"))
            st["pre%d" % which] = hs
        def pretile_store(which):
            sd = sPd if which == 0 else sQd
            p.wait_vm(st["pre%d" % which])
            for jj in range(4):
                I(f"v_or_b32 v{vPre+8+jj}, v{vPre+2*jj}, v{vPre+2*jj+1}")
            I(f"buffer_store_dwordx4 {v(vPre+8,4)}, v{vL16}, {s(sWS,4)}, s{sd} offen")
        def reads(n):
            u = n // 16
            if n % 16 == 0 and u > 0: boundary(u)
            sl = n % 16
            w = WF[n % 4]
            R[n] = [I(f"ds_read_b64_tr_b16 {v(w,2)}, v{vTr} offset:{sl*1024}"),
                    I(f"ds_read_b64_tr_b16 {v(w+2,2)}, v{vTr} offset:{sl*1024+256}")]
        def epilogue(pi):
            kind, arg = kinds[pi]
            a = ACC[pi % 2]
            E = []
            add = lambda t: E.append(lambda t=t: I(t))
            if kind == "F":
                for j in range(8): add(f"v_mul_f32 v{vT+j}, v{a+j}, v{vNa}")
                for j in range(8): add(f"v_exp_f32 v{vT+j}, v{vT+j}")
                for j in range(8): add(f"v_mul_f32 v{a+8+j}, v{a+j}, v{a+8+j}")
                for j in range(8): add(f"v_fma_f32 v{vT+j}, v{vT+j}, v{vVar}, v{vVar}")
                for j in range(8): add(f"v_rcp_f32 v{vT+j}, v{vT+j}")
                for j in range(8): add(f"v_mul_f32 v{a+8+j}, v{a+8+j}, v{vT+j}")
                for jj in range(4): add(f"v_cvt_pk_bf16_f32 v{vT+8+jj}, v{a+8+2*jj}, v{a+9+2*jj}")
                def st_h():
                    I(f"s_add_u32 s{sC}, s{sOutH}, {arg*2048}")
                    I(f"buffer_store_dwordx4 {v(vT+8,4)}, v{vL16}, {s(sWS,4)}, s{sC} offen")
                E.append(st_h)
            else:
                for j in range(16):
                    sc = {"Q": vCq, "K": vRstd, "V": vRsV + j}[kind]
                    add(f"v_mul_f32 v{a+j}, v{a+j}, v{sc}")
                for jj in range(8): add(f"v_cvt_pk_bf16_f32 v{vT+jj}, v{a+2*jj}, v{a+2*jj+1}")
                def st_qkv():
                    if kind == "V":
                        I(f"buffer_store_dwordx4 {v(vT,4)}, v{vVoff}, {s(sWS,4)}, s{sOutV} offen")
                        I(f"buffer_store_dwordx4 {v(vT+4,4)}, v{vVoff}, {s(sWS,4)}, s{sOutV} offen offset:512")
                    else:
                        off = WS_QF if kind == "Q" else WS_KF
                        vo = vL16 if kind == "Q" else vKperm
                        I(f"s_add_u32 s{sC}, s{sOutQK}, {hex(off)}")
                        I(f"buffer_store_dwordx4 {v(vT,4)}, v{vo}, {s(sWS,4)}, s{sC} offen")
                        I(f"s_add_u32 s{sC}, s{sOutQK}, {hex(off + 65536)}")
                        I(f"buffer_store_dwordx4 {v(vT+4,4)}, v{vo}, {s(sWS,4)}, s{sC} offen")
                E.append(st_qkv)
            return E
        for n in range(3): reads(n)
        for n in range(160):
            if n + 3 < 160: reads(n + 3)
            p.wait_lg(R[n])
            pi = n // 32; xi = n % 32
            a = ACC[pi % 2]; w = WF[n % 4]; x = XF + 4*xi
            kind = kinds[pi][0]
            A, B = (x, w) if kind == "V" else (w, x)
            I(f"v_mfma_f32_32x32x16_bf16 {v(a,16)}, {v(A,4)}, {v(B,4)}, {'0' if xi == 0 else v(a,16)}")
            if xi == 2 and pi > 0: fill.extend(epilogue(pi - 1))
            if xi >= 2: fill.pop(3)
            if xi == 31: fill.drain()
        for fn in epilogue(4): fn()
        I("s_waitcnt vmcnt(0)")
        I("s_endpgm")

    b0 = p.mark()
    body([("Q", 0), ("K", 0), ("F", 0), ("F", 1), ("F", 2)])
    b1 = p.mark()
    p.label(f"L_{NAME}_typeA")
    p.restore(snap)
    body([("V", 0), ("F", 0), ("F", 1), ("F", 2), ("F", 3)])
    b2 = p.mark()
    p.label(f"L_{NAME}_end")
    I("s_endpgm")
    pro = p.slice(m0, pro_end)
    traces = [pro + p.slice(b0, b1), pro + p.slice(b1, b2)]
    return traces, kernel_desc(NAME, 256)
```

```python
from common import *

NAME = "k2_kernel"
LDS = 135168
ONES = 131072
sWS = 8
sW, sHead, sQg, sA, sB, sC, sT = 12, 13, 14, 15, 16, 17, 18
sKsrc, sLd, sH, sWa, sWb, sOo, sG = 19, 20, 21, 22, 23, 24, 25
vL16, vV, vInc, vIdx = 1, 3, 4, 5
vQ, vKF, vVA, vVB = 8, 12, 16, 20
S = [32, 48]
O = 64
Y = [80, 96]
FB = [112, 136]
vM = 24
T = 160

def reduce_addr(p, sW, sA, sB, vL16, wr, rd):
    I = p.I
    I(f"s_and_b32 s{sA}, s{sW}, 1")
    I(f"s_lshl_b32 s{sA}, s{sA}, 2")
    I(f"s_lshr_b32 s{sB}, s{sW}, 1")
    I(f"s_add_u32 s{sA}, s{sA}, s{sB}")
    I(f"s_lshl_b32 s{sA}, s{sA}, 13")
    t, hh, x = wr[0], wr[1], rd[0]
    I(f"v_bfe_u32 v{rd[1]}, v{vL16}, 4, 5")
    I(f"v_lshrrev_b32 v{x}, 9, v{vL16}")
    for q in range(4):
        I(f"v_add_u32 v{wr[q]}, {2*q}, v{x}")
        I(f"v_xor_b32 v{wr[q]}, v{wr[q]}, v{rd[1]}")
        I(f"v_and_b32 v{wr[q]}, 7, v{wr[q]}")
        I(f"v_lshlrev_b32 v{wr[q]}, 4, v{wr[q]}")
        I(f"v_lshl_add_u32 v{wr[q]}, v{rd[1]}, 8, v{wr[q]}")
        I(f"v_add_u32 v{wr[q]}, s{sA}, v{wr[q]}")
    I(f"s_lshr_b32 s{sA}, s{sW}, 2")
    I(f"s_lshl_b32 s{sA}, s{sA}, 15")
    I(f"s_and_b32 s{sB}, s{sW}, 3")
    I(f"s_lshl_b32 s{sB}, s{sB}, 11")
    I(f"s_add_u32 s{sA}, s{sA}, s{sB}")
    I(f"v_lshrrev_b32 v{rd[0]}, 7, v{vL16}")
    I(f"v_bfe_u32 v{rd[1]}, v{vL16}, 4, 3")
    I(f"v_lshlrev_b32 v{rd[1]}, 1, v{rd[1]}")
    I(f"v_xor_b32 v{rd[1]}, v{rd[1]}, v{rd[0]}")
    I(f"v_lshlrev_b32 v{rd[1]}, 4, v{rd[1]}")
    I(f"v_lshl_add_u32 v{rd[0]}, v{rd[0]}, 8, v{rd[1]}")
    I(f"v_add_u32 v{rd[0]}, s{sA}, v{rd[0]}")
    I(f"v_xor_b32 v{rd[1]}, 16, v{rd[0]}")

def reduce_tiles(p, acc, wr, rd, tmp):
    I = p.I
    for nb in range(2):
        for q in range(4):
            I(f"ds_write_b128 v{wr[q]}, {v(acc[nb]+4*q,4)} offset:{nb*128}")
    p.wait_all(vm=False)
    I("s_barrier")
    rr = {}
    for ks in range(4):
        for e in range(2):
            rr[ks, e] = I(f"ds_read_b128 {v(tmp+8*ks+4*e,4)}, v{rd[e]} offset:{ks*8192}")
    p.wait_lg([rr[1, 1]])
    for j in range(8): I(f"v_add_f32 v{tmp+j}, v{tmp+j}, v{tmp+8+j}")
    p.wait_lg([rr[3, 1]])
    for j in range(8): I(f"v_add_f32 v{tmp+16+j}, v{tmp+16+j}, v{tmp+24+j}")
    for j in range(8): I(f"v_add_f32 v{tmp+j}, v{tmp+j}, v{tmp+16+j}")

def gen(p):
    kernel_header(p, NAME)
    m0 = p.mark()
    I = p.I
    I("s_cmp_ge_u32 s2, 256")
    I(f"s_cbranch_scc1 L_{NAME}_end")
    I("s_load_dwordx2 s[4:5], s[0:1], 72")
    I(f"v_lshrrev_b32 v2, 6, v0")
    I(f"v_and_b32 v6, 63, v0")
    I(f"v_readfirstlane_b32 s{sW}, v2")
    I(f"v_lshlrev_b32 v{vL16}, 4, v6")
    I(f"s_and_b32 s{sA}, s2, 7")
    I(f"s_lshr_b32 s{sB}, s2, 3")
    I(f"s_lshl_b32 s{sHead}, s{sA}, 2")
    I(f"s_lshr_b32 s{sC}, s{sB}, 3")
    I(f"s_add_u32 s{sHead}, s{sHead}, s{sC}")
    I(f"s_and_b32 s{sQg}, s{sB}, 7")
    I(f"s_lshl_b32 s{sLd}, s{sW}, 11")
    I(f"s_lshl_b32 s{sKsrc}, s{sHead}, 16")
    I(f"s_add_u32 s{sKsrc}, s{sKsrc}, s{sLd}")
    I(f"s_lshl_b32 s{sA}, s{sQg}, 3")
    I(f"s_add_u32 s{sA}, s{sA}, s{sW}")
    I(f"s_lshl_b32 s{sB}, s{sHead}, 6")
    I(f"s_add_u32 s{sB}, s{sB}, s{sA}")
    I(f"s_lshl_b32 s{sT}, s{sB}, 10")
    I(f"s_lshl_b32 s{sOo}, s{sA}, 5")
    I(f"s_add_u32 s{sOo}, s{sOo}, s{sHead}")
    I(f"s_lshl_b32 s{sOo}, s{sOo}, 10")
    I(f"s_add_u32 s{sOo}, s{sOo}, {hex(WS_OF)}")
    I("s_waitcnt lgkmcnt(0)")
    srd(p, sWS, 4, WS_SIZE)
    ql = I(f"buffer_load_dwordx4 {v(vQ,4)}, v{vL16}, {s(sWS,4)}, s{sT} offen")
    dm = {}
    def dma(q):
        hs = []
        for kv in range(2):
            I(f"s_add_u32 m0, s{sLd}, {kv*65536 + q*16384}")
            I(f"s_add_u32 s{sT}, s{sKsrc}, {hex((WS_KF if kv == 0 else WS_VF) + q*16384)}")
            hs.append(I(f"buffer_load_dwordx4 v{vL16}, {s(sWS,4)}, s{sT} offen lds"))
            hs.append(I(f"buffer_load_dwordx4 v{vL16}, {s(sWS,4)}, s{sT} offen offset:1024 lds"))
        dm[q] = hs
    for q in range(4): dma(q)
    I(f"v_lshlrev_b32 v6, 3, v0")
    I(f"v_add_u32 v6, {ONES}, v6")
    I(f"v_mov_b32 v24, 0x3f803f80")
    I(f"v_mov_b32 v25, 0x3f803f80")
    ow = I(f"ds_write_b64 v6, v[24:25]")
    I(f"v_bfe_u32 v6, v{vL16}, 4, 4")
    I(f"v_lshlrev_b32 v6, 4, v6")
    I(f"v_lshrrev_b32 v7, 9, v{vL16}")
    I(f"v_lshl_add_u32 v6, v7, 8, v6")
    I(f"v_add_u32 v6, 65536, v6")
    I(f"v_bfe_u32 v7, v{vL16}, 4, 5")
    I(f"v_subrev_u32 v26, 20, v7")
    I(f"v_cmp_gt_u32 vcc, 8, v26")
    I(f"v_mov_b32 v27, {ONES}")
    I(f"v_mov_b32 v28, {ONES + 64}")
    I(f"v_cndmask_b32 v27, v27, v28, vcc")
    I(f"v_cmp_gt_u32 vcc, 16, v7")
    I(f"v_mov_b32 v28, 4096")
    I(f"v_cndmask_b32 v{vV}, v27, v6, vcc")
    I(f"v_cndmask_b32 v{vInc}, 0, v28, vcc")
    I(f"v_mov_b32 v{vIdx}, 0xdddddddd")
    for r in range(16): I(f"v_mov_b32 v{O+r}, 0")
    I(f"s_and_b32 s{sA}, s{sW}, 1")
    I(f"s_lshr_b32 s{sB}, s{sW}, 1")
    I(f"s_mul_i32 s{sB}, s{sB}, 28")
    I(f"s_lshl_b32 s{sC}, s{sHead}, 1")
    I(f"s_add_u32 s{sC}, s{sC}, s{sA}")
    I(f"s_mul_i32 s{sH}, s{sC}, 112")
    I(f"s_add_u32 s{sH}, s{sH}, s{sB}")
    I(f"s_lshl_b32 s{sH}, s{sH}, 10")
    I(f"s_add_u32 s{sH}, s{sH}, {hex(WS_HF)}")
    I(f"s_mul_i32 s{sWa}, s{sQg}, 288")
    I(f"s_add_u32 s{sWa}, s{sWa}, s{sB}")
    I(f"s_lshl_b32 s{sWa}, s{sWa}, 10")
    I(f"s_add_u32 s{sWa}, s{sWa}, {hex(WS_WF)}")
    I(f"s_add_u32 s{sWb}, s{sWa}, {144*1024}")
    I(f"s_lshl_b32 s{sG}, s{sHead}, 6")
    I(f"s_lshl_b32 s{sA}, s{sW}, 3")
    I(f"s_add_u32 s{sG}, s{sG}, s{sA}")
    I(f"s_lshl_b32 s{sG}, s{sG}, 10")
    I(f"s_lshl_b32 s{sA}, s{sQg}, 7")
    I(f"s_add_u32 s{sG}, s{sG}, s{sA}")
    I(f"s_add_u32 s{sG}, s{sG}, {hex(WS_G)}")
    p.wait_lg(ow)
    p.wait_vm([ql] + dm[0])
    I("s_barrier")
    Kr = {}; VAr = {}; VBr = {}
    def rdK(t): Kr[t] = I(f"ds_read_b128 {v(vKF,4)}, v{vL16} offset:{t*1024}")
    def rdVA(t): VAr[t] = I(f"ds_read_b128 {v(vVA,4)}, v{vV} offset:{(2*t % 8)*512}")
    def rdVB(t): VBr[t] = I(f"ds_read_b128 {v(vVB,4)}, v{vV} offset:{((2*t+1) % 8)*512}")
    def qk(t):
        p.wait_lg(Kr[t])
        I(f"v_mfma_f32_32x32x16_bf16 {v(S[t%2],16)}, {v(vKF,4)}, {v(vQ,4)}, 0")
    rdK(0); rdVA(0)
    qk(0); rdK(1)
    FL = {}
    def f2load(i2, k):
        a, which = divmod(k, 3)
        so = [sH, sWa, sWb][which]
        FL[i2, k] = I(f"buffer_load_dwordx4 {v(FB[i2%2]+4*k,4)}, v{vL16}, {s(sWS,4)}, s{so} offen" + (f" offset:1024" if a else ""))
        if k >= 3:
            I(f"s_add_u32 s{so}, s{so}, 2048")
    def f2mfma(i2, j):
        a, nb = divmod(j, 2)
        p.wait_vm([FL[i2, 3*a], FL[i2, 3*a+1+nb]])
        b = FB[i2 % 2]
        c = "0" if (i2 == 0 and a == 0) else v(Y[nb], 16)
        I(f"v_mfma_f32_32x32x16_bf16 {v(Y[nb],16)}, {v(b+4*(3*a+1+nb),4)}, {v(b+4*3*a,4)}, {c}")
    def ex(r): I(f"v_exp_f32 v{r}, v{r}")
    for t in range(64):
        cur, nxt = S[t % 2], S[(t+1) % 2]
        it, j = divmod(t, 4)
        if t == 12:
            p.wait_vm(dm[1] + dm[2] + dm[3])
            I("s_barrier")
        ex(cur); ex(cur+1)
        if t > 0:
            p.wait_lg(VBr[t-1])
            I(f"v_smfmac_f32_32x32x32_bf16 {v(O,16)}, {v(vVB,4)}, {v(nxt+8,8)}, v{vIdx}")
        rdVB(t)
        for r in (2, 3, 4): ex(cur+r)
        if t < 63:
            qk(t+1)
            if t + 2 < 64: rdK(t+2)
        for r in range(5, 10): ex(cur+r)
        p.wait_lg(VAr[t])
        I(f"v_smfmac_f32_32x32x32_bf16 {v(O,16)}, {v(vVA,4)}, {v(cur,8)}, v{vIdx}")
        if t < 63:
            if j == 3: I(f"v_add_u32 v{vV}, v{vInc}, v{vV}")
            rdVA(t+1)
        for r in range(10, 14): ex(cur+r)
        if it >= 2: f2mfma(it - 2, j)
        if 1 <= it <= 14:
            for k in ([0, 1], [2, 3], [4], [5])[j]: f2load(it - 1, k)
        ex(cur+14); ex(cur+15)
    p.wait_lg(VBr[63])
    I("s_nop 0")
    I(f"v_smfmac_f32_32x32x32_bf16 {v(O,16)}, {v(vVB,4)}, {v(S[1]+8,8)}, v{vIdx}")
    I(f"v_mul_f32 v24, 0, v{O+8}")
    for r in range(8): I(f"v_fma_f32 v24, v{O+r}, 0, v24")
    I(f"v_add_f32 v24, v24, v{O+8}")
    I(f"v_mov_b32 v25, {f32(2.0**-32)}")
    I(f"v_mov_b32 v26, {f32(2.0**64)}")
    I(f"v_cmp_nge_f32 vcc, v24, v25")
    I(f"v_cmp_nle_f32 s[26:27], v24, v26")
    I(f"s_or_b64 vcc, vcc, s[26:27]")
    I(f"s_cbranch_scc1 L_{NAME}_slow")
    fast_end = p.mark()
    p.label(f"L_{NAME}_norm")
    n0 = p.mark()
    I(f"v_rcp_f32 v24, v{O+8}")
    wr = [T, T+1, T+2, T+3]; rd = [T+4, T+5]
    reduce_addr(p, sW, sA, sB, vL16, wr, rd)
    for r in range(8): I(f"v_mul_f32 v{O+r}, v{O+r}, v24")
    for jj in range(4): I(f"v_cvt_pk_bf16_f32 v{28+jj}, v{O+2*jj}, v{O+2*jj+1}")
    I(f"buffer_store_dwordx4 v[28:31], v{vL16}, {s(sWS,4)}, s{sOo} offen")
    I("s_barrier")
    R0 = 112
    reduce_tiles(p, Y, wr, rd, R0)
    for j in range(8): I(f"v_mul_f32 v{R0+8+j}, {f32(-LOG2E)}, v{R0+j}")
    for j in range(8): I(f"v_exp_f32 v{R0+8+j}, v{R0+8+j}")
    I(f"v_lshrrev_b32 v24, 7, v{vL16}")
    I(f"v_bfe_u32 v25, v{vL16}, 4, 3")
    I(f"v_lshlrev_b32 v24, 10, v24")
    I(f"v_lshl_add_u32 v24, v25, 4, v24")
    for j in range(8): I(f"v_add_f32 v{R0+8+j}, 1.0, v{R0+8+j}")
    for j in range(8): I(f"v_rcp_f32 v{R0+8+j}, v{R0+8+j}")
    for j in range(8): I(f"v_mul_f32 v{R0+j}, v{R0+j}, v{R0+8+j}")
    for jj in range(4): I(f"v_cvt_pk_bf16_f32 v{R0+16+jj}, v{R0+2*jj}, v{R0+2*jj+1}")
    I(f"buffer_store_dwordx4 {v(R0+16,4)}, v24, {s(sWS,4)}, s{sG} offen")
    I("s_waitcnt vmcnt(0)")
    I("s_endpgm")
    n1 = p.mark()
    p.label(f"L_{NAME}_slow")
    s0 = p.mark()
    vKa, vVa = 25, 26
    I("s_waitcnt lgkmcnt(0)")
    I("s_nop 15")
    I(f"v_mov_b32 v{vM}, 0xff800000")
    I(f"v_mov_b32 v{vKa}, v{vL16}")
    I(f"s_mov_b32 s{sA}, 64")
    p.label(f"L_{NAME}_slow1")
    l1a = p.mark()
    I(f"ds_read_b128 {v(vKF,4)}, v{vKa}")
    I(f"v_add_u32 v{vKa}, 1024, v{vKa}")
    I("s_waitcnt lgkmcnt(0)")
    I(f"v_mfma_f32_32x32x16_bf16 {v(S[0],16)}, {v(vKF,4)}, {v(vQ,4)}, 0")
    I("s_nop 15")
    for r in range(0, 16, 2): I(f"v_max3_f32 v{vM}, v{S[0]+r}, v{S[0]+r+1}, v{vM}")
    I(f"s_sub_u32 s{sA}, s{sA}, 1")
    I(f"s_cmp_lg_u32 s{sA}, 0")
    I(f"s_cbranch_scc1 L_{NAME}_slow1")
    l1b = p.mark()
    I(f"v_mov_b32 v27, v{vM}")
    I("s_nop 1")
    I(f"v_permlane32_swap_b32 v{vM}, v27")
    I("s_nop 1")
    I(f"v_max_f32 v{vM}, v{vM}, v27")
    for r in range(16): I(f"v_mov_b32 v{O+r}, 0")
    I(f"v_mov_b32 v{vKa}, v{vL16}")
    I(f"v_mul_u32_u24 v27, 15, v{vInc}")
    I(f"v_sub_u32 v{vVa}, v{vV}, v27")
    I(f"v_lshrrev_b32 v27, 2, v{vInc}")
    I(f"s_mov_b32 s{sA}, 64")
    p.label(f"L_{NAME}_slow2")
    l2a = p.mark()
    I(f"ds_read_b128 {v(vKF,4)}, v{vKa}")
    I(f"ds_read_b128 {v(vVA,4)}, v{vVa}")
    I(f"ds_read_b128 {v(vVB,4)}, v{vVa} offset:512")
    I(f"v_add_u32 v{vKa}, 1024, v{vKa}")
    I(f"v_add_u32 v{vVa}, v27, v{vVa}")
    I("s_waitcnt lgkmcnt(0)")
    I(f"v_mfma_f32_32x32x16_bf16 {v(S[0],16)}, {v(vKF,4)}, {v(vQ,4)}, 0")
    I("s_nop 15")
    for r in range(16): I(f"v_sub_f32 v{S[0]+r}, v{S[0]+r}, v{vM}")
    for r in range(16): ex(S[0]+r)
    I("s_nop 1")
    I(f"v_smfmac_f32_32x32x32_bf16 {v(O,16)}, {v(vVA,4)}, {v(S[0],8)}, v{vIdx}")
    I(f"v_smfmac_f32_32x32x32_bf16 {v(O,16)}, {v(vVB,4)}, {v(S[0]+8,8)}, v{vIdx}")
    I(f"s_sub_u32 s{sA}, s{sA}, 1")
    I(f"s_cmp_lg_u32 s{sA}, 0")
    I(f"s_cbranch_scc1 L_{NAME}_slow2")
    l2b = p.mark()
    I("s_nop 15")
    I(f"s_branch L_{NAME}_norm")
    s1 = p.mark()
    p.label(f"L_{NAME}_end")
    I("s_endpgm")
    fast = p.slice(m0, fast_end)
    norm = p.slice(n0, n1)
    l1 = p.slice(l1a, l1b); l2 = p.slice(l2a, l2b)
    slow = p.slice(s0, l1a) + l1 + l1 + p.slice(l1b, l2a) + l2 + l2 + p.slice(l2b, s1)
    traces = [fast + norm, fast + slow + norm]
    return traces, kernel_desc(NAME, 168)
```

```python
from common import *
from k2 import reduce_addr, reduce_tiles

NAME = "k3_kernel"
LDS = 65536
sWS, sX, sOut = 8, 12, 16
sW, sRt, sCt, sA, sB, sC, sO, sWa, sWb, sRow = 20, 21, 22, 23, 24, 25, 26, 27, 28, 29
vL16 = 1
OFr = 32
WFr = 64
Y = [128, 144]
T = 160

def gen(p):
    kernel_header(p, NAME)
    m0 = p.mark()
    I = p.I
    I("s_cmp_ge_u32 s2, 256")
    I(f"s_cbranch_scc1 L_{NAME}_end")
    I("s_load_dwordx2 s[4:5], s[0:1], 72")
    I("s_load_dwordx2 s[6:7], s[0:1], 0")
    I("s_load_dwordx2 s[30:31], s[0:1], 56")
    I(f"v_lshrrev_b32 v2, 6, v0")
    I(f"v_and_b32 v6, 63, v0")
    I(f"v_readfirstlane_b32 s{sW}, v2")
    I(f"v_lshlrev_b32 v{vL16}, 4, v6")
    I(f"s_and_b32 s{sA}, s2, 7")
    I(f"s_lshr_b32 s{sB}, s2, 3")
    I(f"s_lshl_b32 s{sRt}, s{sA}, 2")
    I(f"s_lshr_b32 s{sC}, s{sB}, 3")
    I(f"s_add_u32 s{sRt}, s{sRt}, s{sC}")
    I(f"s_and_b32 s{sCt}, s{sB}, 7")
    I(f"s_and_b32 s{sA}, s{sW}, 1")
    I(f"s_lshr_b32 s{sB}, s{sW}, 1")
    I(f"s_lshl_b32 s{sB}, s{sB}, 3")
    I(f"s_lshl_b32 s{sC}, s{sRt}, 1")
    I(f"s_add_u32 s{sC}, s{sC}, s{sA}")
    I(f"s_lshl_b32 s{sO}, s{sC}, 5")
    I(f"s_add_u32 s{sO}, s{sO}, s{sB}")
    I(f"s_lshl_b32 s{sO}, s{sO}, 10")
    I(f"s_add_u32 s{sO}, s{sO}, {hex(WS_OF)}")
    I(f"s_mul_i32 s{sWa}, s{sCt}, 288")
    I(f"s_add_u32 s{sWa}, s{sWa}, s{sB}")
    I(f"s_lshl_b32 s{sWa}, s{sWa}, 10")
    I(f"s_add_u32 s{sWa}, s{sWa}, {hex(WS_WF + 112*1024)}")
    I(f"s_add_u32 s{sWb}, s{sWa}, {144*1024}")
    I(f"s_lshl_b32 s{sRow}, s{sRt}, 6")
    I(f"s_lshl_b32 s{sA}, s{sW}, 3")
    I(f"s_add_u32 s{sRow}, s{sRow}, s{sA}")
    I(f"s_lshl_b32 s{sRow}, s{sRow}, 10")
    I(f"s_lshl_b32 s{sA}, s{sCt}, 7")
    I(f"s_add_u32 s{sRow}, s{sRow}, s{sA}")
    I(f"v_lshrrev_b32 v24, 7, v{vL16}")
    I(f"v_bfe_u32 v25, v{vL16}, 4, 3")
    I(f"v_lshlrev_b32 v24, 10, v24")
    I(f"v_lshl_add_u32 v24, v25, 4, v24")
    I("s_waitcnt lgkmcnt(0)")
    srd(p, sWS, 4, WS_SIZE)
    srd(p, sX, 6, 2048*1024)
    srd(p, sOut, 30, 2048*1024)
    L = {}
    for h in range(8):
        for which, so in enumerate((sO, sWa, sWb)):
            dst = OFr + 4*h if which == 0 else WFr + 4*(2*h + which - 1)
            L[h, which] = I(f"buffer_load_dwordx4 {v(dst,4)}, v{vL16}, {s(sWS,4)}, s{so} offen offset:{(h%4)*1024}")
        if h == 3:
            for so in (sO, sWa, sWb): I(f"s_add_u32 s{so}, s{so}, 4096")
    xl = I(f"buffer_load_dwordx4 v[8:11], v24, {s(sX,4)}, s{sRow} offen")
    I(f"s_add_u32 s{sA}, s{sRow}, {hex(WS_G)}")
    gl = I(f"buffer_load_dwordx4 v[12:15], v24, {s(sWS,4)}, s{sA} offen")
    wr = [T, T+1, T+2, T+3]; rd = [T+4, T+5]
    reduce_addr(p, sW, sA, sB, vL16, wr, rd)
    for h in range(8):
        for nb in range(2):
            p.wait_vm([L[h, 0], L[h, 1+nb]])
            I(f"v_mfma_f32_32x32x16_bf16 {v(Y[nb],16)}, {v(WFr+4*(2*h+nb),4)}, {v(OFr+4*h,4)}, {'0' if h == 0 else v(Y[nb],16)}")
    R0 = 64
    reduce_tiles(p, Y, wr, rd, R0)
    p.wait_vm([xl, gl])
    for jj in range(4):
        I(f"v_lshlrev_b32 v{R0+8+2*jj}, 16, v{12+jj}")
        I(f"v_and_b32 v{R0+9+2*jj}, 0xffff0000, v{12+jj}")
        I(f"v_lshlrev_b32 v{R0+16+2*jj}, 16, v{8+jj}")
        I(f"v_and_b32 v{R0+17+2*jj}, 0xffff0000, v{8+jj}")
    for j in range(8): I(f"v_fma_f32 v{R0+j}, v{R0+j}, v{R0+8+j}, v{R0+16+j}")
    for jj in range(4): I(f"v_cvt_pk_bf16_f32 v{R0+24+jj}, v{R0+2*jj}, v{R0+2*jj+1}")
    I(f"buffer_store_dwordx4 {v(R0+24,4)}, v24, {s(sOut,4)}, s{sRow} offen")
    I("s_waitcnt vmcnt(0)")
    m1 = p.mark()
    p.label(f"L_{NAME}_end")
    I("s_endpgm")
    return [p.slice(m0, m1)], kernel_desc(NAME, 168)
```

```python
import sys
from common import *
import k1, k2, k3

HEADER = """; recurrent_scan__mha_block__swiglu_ffn__prompt : x + MHA(LN x) * silu(FFN(LN x))
"""
def build(mods, out):
    p = Prog()
    for m in mods:
        p.raw(f"; @launch kernel={m.NAME} grid=(256,1,1) block=(512,1,1) lds={m.LDS}")
    p.raw('.amdgcn_target "amdgcn-amd-amdhsa--gfx950"')
    p.raw(".text")
    descs = []
    allok = True
    for m in mods:
        traces, d = m.gen(p)
        descs.append(d)
        for rep in range(2):
            added = [fix_hazards(t) for t in traces]
        print(m.NAME, "trace lens", [len(t) for t in traces], "second-pass nops", added,
              "total nops", sum(i.nops for i in set(x for t in traces for x in t)))
        for t in traces:
            e = check_waits(t, m.NAME)
            if e:
                allok = False
                print("\n".join(e[:20]))
    p.raw('.section .rodata,"a"')
    for d in descs: p.raw(d)
    open(out, "w").write(HEADER + p.text())
    print("written", out, "ok" if allok else "WAIT ERRORS")
if __name__ == "__main__":
    build([k1, k2, k3], sys.argv[1] if len(sys.argv) > 1 else "out.s")
```
